```python
import torch

def _softmax(x, axis=-1):
    return torch.softmax(x, dim=axis)
def _gelu(x):
    return torch.nn.functional.gelu(x, approximate="tanh")
def _silu(x):
    return torch.nn.functional.silu(x)
def _sigmoid(x):
    return torch.sigmoid(x)
def _layernorm(x, axis=-1, eps=1e-5):
    m = x.mean(dim=axis, keepdim=True)
    v = x.var(dim=axis, keepdim=True, unbiased=False)
    return (x - m) / torch.sqrt(v + eps)
def _scatter_add(tgt, idx, src, axis=0):
    return tgt.clone().index_add_(axis, idx, src)
def _segment_sum(src, seg, n):
    out = torch.zeros((n,) + src.shape[1:], dtype=src.dtype)
    return out.index_add_(0, seg, src)
def _pad(x, pw):
    flat = tuple(v for pair in reversed(pw) for v in pair)
    return torch.nn.functional.pad(x, flat)

kernel_name = 'sequential_preLN__sliding_block_cached__moe_arch_mod__decode'

def setup_inputs():

    _w = (lambda a: (lambda t: t.to(torch.bfloat16) if t.is_floating_point() else t)(torch.as_tensor(a)))
    def _A_setup():
        B, Sq, D = 1, 1, 576
        Hq, Hkv, Sk, Dh = 32, 16, 65536, 128
        assert Hq % Hkv == 0, (Hq, Hkv)
        return {
            "x": _w((lambda *s: torch.randn(*s, dtype=torch.bfloat16) * 0.05)(B, Sq, D)),
            "k_cache": _w((lambda *s: torch.randn(*s, dtype=torch.bfloat16) * 3.2)(B, Hkv, Sk, Dh)),
            "v_cache": _w((lambda *s: torch.randn(*s, dtype=torch.bfloat16) * 0.4)(B, Hkv, Sk, Dh)),
            "wq": _w((lambda *s: torch.randn(*s, dtype=torch.bfloat16) * 3.2)(D, Hq * Dh) * (D ** -0.5)),
            "wo": _w((lambda *s: torch.randn(*s, dtype=torch.bfloat16) * 0.4)(Hq * Dh, D) * ((Hq * Dh) ** -0.5)),
        }
    _A_in = _A_setup()

    def _B_setup():
        B, S, D, F, C = 1, 1, 576, 4608, 1
        return {
            "x": _w((lambda *s: torch.randn(*s, dtype=torch.bfloat16) * 0.05)(B, S, D)),
            "w_r": _w((lambda *s: torch.randn(*s, dtype=torch.bfloat16) * 0.05)(D)),
            "w_gate": _w((lambda *s: torch.randn(*s, dtype=torch.bfloat16) * 0.05)(D, F)),
            "w_up": _w((lambda *s: torch.randn(*s, dtype=torch.bfloat16) * 0.05)(D, F)),
            "w_down": _w((lambda *s: torch.randn(*s, dtype=torch.bfloat16) * 0.05)(F, D)),
        }
    _B_in = _B_setup()

    return {
        "A_x": _A_in["x"],
        "A_k_cache": _A_in["k_cache"],
        "A_v_cache": _A_in["v_cache"],
        "A_wq": _A_in["wq"],
        "A_wo": _A_in["wo"],
        "B_x": _B_in["x"],
        "B_w_r": _B_in["w_r"],
        "B_w_gate": _B_in["w_gate"],
        "B_w_up": _B_in["w_up"],
        "B_w_down": _B_in["w_down"],
    }

def reference(A_x, A_k_cache, A_v_cache, A_wq, A_wo, B_x, B_w_r, B_w_gate, B_w_up, B_w_down):
    def _A_ref(x, k_cache, v_cache, wq, wo):
        B, Sq, D = x.shape
        Hq, Dh = 32, 128
        Hkv, Sk = k_cache.shape[1], k_cache.shape[2]
        W = min(4096, max(256, Sk // 4))
        rep = Hq // Hkv
        q = (lambda x, *d: x.permute(*d))((x @ wq).reshape(B, Sq, Hq, Dh), 0, 2, 1, 3)
        k = (lambda x, n, axis: torch.repeat_interleave(x, n, dim=axis))(k_cache[:, :, Sk - W:, :], rep, axis=1)
        v = (lambda x, n, axis: torch.repeat_interleave(x, n, dim=axis))(v_cache[:, :, Sk - W:, :], rep, axis=1)
        scores = torch.einsum("bhqd,bhkd->bhqk", q, k) * (Dh ** -0.5)
        p = _softmax(scores, axis=-1)
        o = torch.einsum("bhqk,bhkd->bhqd", p, v)
        return (lambda x, *d: x.permute(*d))(o, 0, 2, 1, 3).reshape(B, Sq, Hq * Dh) @ wo

    def _B_ref(x, w_r, w_gate, w_up, w_down):
        B, S, D = x.shape
        C = 1
        r = x @ w_r
        idx = torch.argsort(-r, axis=-1)[:, :C]
        idx_e = (lambda x, n, axis: torch.repeat_interleave(x, n, dim=axis))(idx.reshape(B, C, 1), D, axis=2)
        x_sel = (lambda x, i, axis: torch.take_along_dim(x, i, dim=axis))(x, idx_e, axis=1)
        g = _silu(x_sel @ w_gate)
        u = x_sel @ w_up
        y = (g * u) @ w_down
        r_sel = _sigmoid((lambda x, i, axis: torch.take_along_dim(x, i, dim=axis))(r, idx, axis=1))
        y = y * r_sel.reshape(B, C, 1)
        b_off = (torch.arange(B) * S).reshape(B, 1)
        flat_idx = (idx + b_off).reshape(B * C)
        zero = (x * 0.0).reshape(B * S, D)
        upd = _scatter_add(zero, flat_idx, y.reshape(B * C, D), axis=0)
        return x + upd.reshape(B, S, D)

    x = A_x
    h = x + _A_ref(_layernorm(x, axis=-1), A_k_cache, A_v_cache, A_wq, A_wo)
    h2 = h + _B_ref(_layernorm(h, axis=-1), B_w_r, B_w_gate, B_w_up, B_w_down)
    return h2
```

```python
import re
NAME = "sequential_preLN__sliding_block_cached__moe_arch_mod__decode"

REG_RE = re.compile(r'\b([vs])(\d+)\b|\b([vs])\[(\d+):(\d+)\]|\b(vcc|exec|m0|scc)\b')
def regs_of(op):
    out = set()
    for m in REG_RE.finditer(op):
        if m.group(1):
            out.add((m.group(1), int(m.group(2))))
        elif m.group(3):
            for i in range(int(m.group(4)), int(m.group(5)) + 1):
                out.add((m.group(3), i))
        else:
            out.add((m.group(6), 0))
    return out

TRANS = ("v_exp_f32", "v_log_f32", "v_rcp_f32", "v_rsq_f32", "v_sqrt_f32", "v_sin_f32", "v_cos_f32")

class Ins:
    def __init__(self, text):
        self.text = text
        t = text.split(";")[0].strip()
        self.is_label = t.endswith(":")
        self.empty = (t == "") or t.startswith(".")
        self.op = ""
        self.w = set(); self.r = set()
        self.kind = "other"
        self.dpp = False
        if self.is_label or self.empty:
            return
        parts = t.split(None, 1)
        self.op = parts[0]
        rest = parts[1] if len(parts) > 1 else ""
        ops = []; depth = 0; cur = ""
        for ch in rest:
            if ch == "[": depth += 1
            if ch == "]": depth -= 1
            if ch == "," and depth == 0:
                ops.append(cur.strip()); cur = ""
            else:
                cur += ch
        if cur.strip(): ops.append(cur.strip())
        mods = ""
        if ops:
            toks = ops[-1].split(None, 1)
            ops[-1] = toks[0]
            mods = toks[1] if len(toks) > 1 else ""
        self.ops = ops; self.mods = mods
        op = self.op
        R = [regs_of(o) for o in ops]
        if op.startswith("v_mfma"):
            self.kind = "mfma"
            self.w = R[0]; self.ra = R[1] | R[2]; self.rc = R[3]; self.r = self.ra | self.rc
        elif op.startswith("v_"):
            self.kind = "valu"
            self.dpp = op.endswith("_dpp") or "quad_perm" in mods or "row_" in mods
            if op.startswith("v_permlane"):
                self.w = R[0] | R[1]; self.r = R[0] | R[1]; self.kind = "perm"
            elif op.startswith("v_cmp"):
                self.w = R[0]; self.r = set().union(*R[1:])
            elif op.startswith("v_add_co") or op.startswith("v_addc_co") or op.startswith("v_sub_co"):
                self.w = R[0] | R[1]; self.r = set().union(*R[2:])
            else:
                self.w = R[0]; self.r = set().union(*R[1:]) if len(R) > 1 else set()
                if op.startswith("v_fmac") or op.startswith("v_dot2c") or self.dpp:
                    self.r |= R[0]
            self.trans = any(op.startswith(x) for x in TRANS)
            self.rdlane = op.startswith("v_readfirstlane") or op.startswith("v_readlane")
        elif op.startswith("buffer_") or op.startswith("global_"):
            self.kind = "vmem"
            if "_load" in op:
                self.w = R[0]; self.r = set().union(*R[1:])
                self.store = False
            else:
                self.r = set().union(*R); self.store = True
                if op.startswith("buffer_"): self.data = R[0]
                else: self.data = R[1]
                self.wide = op.endswith("x4") or op.endswith("x3")
        elif op.startswith("ds_"):
            self.kind = "ds"
            if op.startswith("ds_read") or op.startswith("ds_bpermute") or op.startswith("ds_swizzle"):
                self.w = R[0]; self.r = set().union(*R[1:])
            else:
                self.r = set().union(*R)
        elif op.startswith("s_"):
            self.kind = "salu"
            if op == "s_nop":
                self.nop = int(ops[0], 0) + 1

    def states(self):
        if self.is_label or self.empty: return 0
        if self.op == "s_nop": return self.nop
        return 1

def need(prod, cons):
    n = 0
    pv = prod.kind in ("valu", "perm")
    vw = {x for x in prod.w if x[0] == "v"}
    sw = {x for x in prod.w if x[0] != "v"}
    if pv:
        if cons.kind == "mfma" and vw & cons.r: n = max(n, 2)
        if cons.kind in ("valu",) and cons.dpp and vw & cons.r: n = max(n, 2)
        if cons.kind == "perm" and vw & cons.r: n = max(n, 2)
        if prod.kind == "valu" and prod.trans and cons.kind in ("valu", "perm", "mfma") and vw & cons.r: n = max(n, 1)
        if cons.kind == "valu" and cons.rdlane and vw & cons.r: n = max(n, 1)
        if sw:
            if cons.kind in ("valu", "perm") and sw & cons.r: n = max(n, 2)
            if cons.kind == "vmem" and sw & cons.r: n = max(n, 5)
            if cons.kind == "valu" and cons.op.startswith("v_cndmask") and ("vcc", 0) in sw and len(cons.ops) == 3: n = max(n, 2)
    if prod.kind == "valu" and prod.op.startswith("v_dot"):
        if cons.kind in ("valu", "perm", "mfma", "vmem", "ds") and vw & (cons.r | cons.w):
            if cons.op == prod.op and not (vw & (regs_of(cons.ops[1]) | regs_of(cons.ops[2]))):
                pass
            else:
                n = max(n, 3)
    if prod.kind == "mfma":
        if cons.kind == "mfma":
            if prod.w & cons.ra: n = max(n, 8)
            if prod.w & cons.rc and prod.w != cons.rc: n = max(n, 6)
            if prod.w & cons.w and prod.w & cons.rc != prod.w: n = max(n, 8)
        elif cons.kind in ("valu", "perm", "vmem", "ds"):
            if prod.w & (cons.r | cons.w): n = max(n, 8)
            if cons.kind in ("valu", "perm") and prod.rc & cons.w: n = max(n, 3)
    if prod.kind == "vmem" and getattr(prod, "store", False) and getattr(prod, "wide", False):
        if cons.kind in ("valu", "perm", "mfma") and prod.data & cons.w: n = max(n, 2)
        elif prod.data & cons.w: n = max(n, 1)
    return n

class Asm:
    def __init__(self):
        self.L = []
    def __call__(self, s):
        for line in s.strip("\n").split("\n"):
            line = line.strip()
            if line:
                self.L.append(line)
    def fix(self):
        out = []
        branches = {}
        def scan(idx, dist, ins, depth=0):
            req = 0
            i = idx
            while i >= 0 and dist < 12:
                p = out[i]
                if p.is_label:
                    lab = p.text.split(":")[0].strip()
                    if depth < 4:
                        for b in branches.get(lab, []):
                            req = max(req, scan(b, dist, ins, depth + 1))
                elif not p.empty:
                    if p.op in ("s_branch", "s_endpgm") and i != idx:
                        break
                    nd = need(p, ins)
                    if nd > dist: req = max(req, nd - dist)
                    dist += p.states()
                i -= 1
            return req
        for line in self.L:
            ins = Ins(line)
            if not (ins.is_label or ins.empty):
                req = scan(len(out) - 1, 0, ins)
                if req:
                    out.append(Ins(f"s_nop {req-1}"))
                if ins.op.startswith("s_cbranch") or ins.op == "s_branch":
                    branches.setdefault(ins.ops[0], []).append(len(out))
            out.append(ins)
        return out
    def text(self):
        o = []
        for ins in self.fix():
            o.append(ins.text if ins.is_label else "    " + ins.text)
        return "\n".join(o) + "\n"

def wrap(body, grid, block, lds, nvgpr, nsgpr=102, header=""):
    acc = (nvgpr + 3) // 4 * 4
    return f"""{header}; @launch grid=({grid},1,1) block=({block},1,1) lds={lds}
.amdgcn_target "amdgcn-amd-amdhsa--gfx950"
.text
.globl {NAME}_kernel
.p2align 8
.type {NAME}_kernel,@function
{NAME}_kernel:
{body}
.section .rodata,"a"
.p2align 6
.amdhsa_kernel {NAME}_kernel
  .amdhsa_next_free_vgpr {nvgpr}
  .amdhsa_next_free_sgpr {nsgpr}
  .amdhsa_accum_offset {acc}
  .amdhsa_group_segment_fixed_size 0
  .amdhsa_kernarg_size 104
  .amdhsa_user_sgpr_count 2
  .amdhsa_user_sgpr_kernarg_segment_ptr 1
  .amdhsa_system_sgpr_workgroup_id_x 1
.end_amdhsa_kernel
"""
```

```python
import sys, struct
from asmlib import *

def f2u(x): return struct.unpack("<I", struct.pack("<f", x))[0]
def hx(x): return "0x%08x" % (x & 0xffffffff)

QP = 0x1000
ST = 0x30000
OP = 0x40000
AP = 0x80000
YP = 0x90000
TS = 0x200000
WS_BYTES = 0x400000
L_ACCQ = 0
L_ACCGU = 256
L_LNST = 512
L_Q = 1024
L_STAT = 1536
L_FAC = 1792
L_H = 2048
L_SLAB = 4608
L_SLAB2 = 4608 + 12288
LDS_BYTES = 4608 + 2*12288

class Regs:
    def __init__(self, start): self.n = start
    def __call__(self, k=1, align=1):
        self.n = (self.n + align - 1) // align * align
        r = self.n; self.n += k
        return r

def gen(fn, debug=False, k0=2, v0n=3, g0=3, wo_early=4, nt="nt", prefetch_code=True):
    a = Asm()
    U = 6
    V = Regs(1)
    def vr(b, n): return f"v[{b}:{b+n-1}]"
    lane = V(); M = [V() for _ in range(4)]; l3 = V(); l7 = V()
    t = [V() for _ in range(10)]
    vKoff = V(); vVoff = V()
    vmw = V(); vxc = V(); vh = V()
    D = V(4, 4); D2 = V(4, 4); D3 = V(4, 4)
    G = V(16, 4)
    B = V(24, 4)
    Kr = V(24, 4); Vr = V(24, 4)
    WQ = Vr + 16
    GU = V(24, 4); DN = V(12, 4)
    assert DN == GU + 24
    WOr = [GU + 4*i for i in range(9)] + [Kr + 4*i for i in range(3)]
    vA = V(2, 2)
    nv = V.n
    sWAVE, sH, sC, sL, sTAG = 3, 4, 5, 6, 7
    SX, SK, SV, SWQ, SWS, SWT, SWR, SOUT = 32, 36, 40, 44, 48, 52, 56, 60
    def srd(b): return f"s[{b}:{b+3}]"
    sM1, sM2, sM3 = 64, 66, 68
    s4096, sT0, sT1, sCNT, sF, sKAP, sCOUNT, sT2 = 70, 71, 72, 73, 74, 75, 76, 77
    sUSE = 78
    nstamp = [0]
    def stamp():
        if debug:
            i = nstamp[0]; nstamp[0] += 1
            assert i < 11
            a(f"s_memrealtime s[{80+2*i}:{81+2*i}]")
    lab = [0]
    def L(name):
        lab[0] += 1
        return f"L{name}_{lab[0]}"
    def bf16r(dst, src):
        a(f"v_cvt_pk_bf16_f32 v{dst}, v{src}, v{src}\nv_and_b32 v{dst}, 0xffff0000, v{dst}")
    def check(tagregs, acc, tmp):
        parts = []
        regs = list(tagregs)
        tmps = list(tmp)
        while regs:
            if len(regs) >= 2:
                x, y = regs.pop(0), regs.pop(0)
                d = tmps.pop(0)
                a(f"v_bitop3_b32 v{d}, v{x}, v{y}, s{sTAG} bitop3:0x7e")
            else:
                x = regs.pop(0); d = tmps.pop(0)
                a(f"v_xor_b32 v{d}, s{sTAG}, v{x}")
            parts.append(d)
        while len(parts) > 1:
            if len(parts) >= 3:
                x, y, z = parts.pop(0), parts.pop(0), parts.pop(0)
                a(f"v_or3_b32 v{x}, v{x}, v{y}, v{z}")
            else:
                x, y = parts.pop(0), parts.pop(0)
                a(f"v_or_b32 v{x}, v{x}, v{y}")
            parts.append(x)
        a(f"v_cmp_ne_u32 vcc, 0, v{parts[0]}")
    def poll(issue, tagregs, first_wait, between=None, name="p", sleep=0):
        ok = L(name + "ok"); rt = L(name + "rt")
        issue()
        if between: between()
        a(f"s_waitcnt vmcnt({first_wait})")
        check(tagregs, None, t[0:4])
        a(f"s_cbranch_vccz {ok}")
        a(f"s_movk_i32 s{sCNT}, 0x7fff")
        a(f"{rt}:")
        if sleep: a(f"s_sleep {sleep}")
        issue()
        a(f"s_sub_u32 s{sCNT}, s{sCNT}, 1\ns_cbranch_scc1 {ok}")
        a("s_waitcnt vmcnt(0)")
        check(tagregs, None, t[0:4])
        a(f"s_cbranch_vccnz {rt}")
        a(f"{ok}:")
        a("s_waitcnt vmcnt(%d)" % first_wait)
    def row_allreduce(op, regs):
        for sh in (8, 4, 2, 1):
            for r in regs:
                a(f"{op}_dpp v{r}, v{r}, v{r} row_ror:{sh} row_mask:0xf bank_mask:0xf")
    def xor16_32(op, r, tmp):
        a(f"v_mov_b32 v{tmp}, v{r}\nv_permlane16_swap_b32 v{r}, v{tmp}\n{op} v{r}, v{r}, v{tmp}")
        a(f"v_mov_b32 v{tmp}, v{r}\nv_permlane32_swap_b32 v{r}, v{tmp}\n{op} v{r}, v{r}, v{tmp}")
    def treduce4(r):
        a(f"""
        v_permlane16_swap_b32 v{r}, v{r+1}
        v_permlane16_swap_b32 v{r+2}, v{r+3}
        v_add_f32 v{r}, v{r}, v{r+1}
        v_add_f32 v{r+2}, v{r+2}, v{r+3}
        v_permlane32_swap_b32 v{r}, v{r+2}
        v_add_f32 v{r}, v{r}, v{r+2}
        """)
    def ln_scalars(vs1, vs2, vmean, vden, vrinv):
        a(f"""
        v_mul_f32 v{vs1}, {hx(f2u(1.0/576))}, v{vs1}
        v_mul_f32 v{vs2}, {hx(f2u(1.0/576))}, v{vs2}
        v_fma_f32 v{vs2}, -v{vs1}, v{vs1}, v{vs2}
        v_max_f32 v{vs2}, 0, v{vs2}
        """)
        bf16r(vs2, vs2)
        bf16r(vmean, vs1)
        a(f"v_add_f32 v{vs2}, {hx(f2u(1e-5))}, v{vs2}")
        bf16r(vs2, vs2)
        a(f"v_sqrt_f32 v{vs2}, v{vs2}")
        bf16r(vden, vs2)
        a(f"v_rcp_f32 v{vrinv}, v{vden}")
    def ln_apply(regs, vmean, vden, vrinv, tmps):
        for r in regs: a(f"v_sub_f32 v{r}, v{r}, v{vmean}")
        for r in regs: a(f"v_cvt_pk_bf16_f32 v{r}, v{r}, v{r}")
        for r in regs: a(f"v_and_b32 v{r}, 0xffff0000, v{r}")
        for r, q in zip(regs, tmps): a(f"v_mul_f32 v{q}, v{r}, v{vrinv}")
        for r, q in zip(regs, tmps): a(f"v_fma_f32 v{r}, -v{q}, v{vden}, v{r}")
        for r, q in zip(regs, tmps): a(f"v_fma_f32 v{r}, v{r}, v{vrinv}, v{q}")
    def bbuild(dst, dup, dpp=None):
        for r in range(4):
            d = dpp[r] if dpp else None
            if d: a(f"v_and_b32_dpp v{dst+r}, v{dup}, v{M[r]} {d} row_mask:0xf bank_mask:0xf")
            else: a(f"v_and_b32 v{dst+r}, v{dup}, v{M[r]}")
    def ld4(dst, voff, s, off, fl=nt):
        so, o = ("0", off) if off < 4096 else (f"s{s4096}", off - 4096)
        assert o < 4096
        a(f"buffer_load_dwordx4 {vr(dst,4)}, v{voff}, {srd(s)}, {so} offen offset:{o} {fl}")
    def mfma(d, A, Bq, c=None):
        a(f"v_mfma_f32_16x16x32_bf16 {vr(d,4)}, {vr(A,4)}, {vr(Bq,4)}, {vr(d,4) if c is None else c}")

    a(f"""
    s_cmp_ge_u32 s2, 256
    s_cbranch_scc1 Lend
    """)
    stamp()
    a(f"""
    s_load_dwordx8 s[8:15], s[0:1], 0
    s_load_dwordx2 s[30:31], s[0:1], 96
    s_load_dwordx2 s[16:17], s[0:1], 32
    s_load_dwordx8 s[20:27], s[0:1], 48
    s_load_dwordx2 s[28:29], s[0:1], 80
    v_and_b32 v{lane}, 63, v0
    v_lshrrev_b32 v{t[0]}, 6, v0
    v_readfirstlane_b32 s{sWAVE}, v{t[0]}
    s_and_b32 s{sT0}, s2, 7
    s_lshr_b32 s{sT1}, s2, 3
    s_lshr_b32 s{sT2}, s{sT1}, 4
    s_lshl_b32 s{sH}, s{sT0}, 1
    s_add_u32 s{sH}, s{sH}, s{sT2}
    s_and_b32 s{sC}, s{sT1}, 15
    s_lshl_b32 s{sL}, s{sH}, 4
    s_add_u32 s{sL}, s{sL}, s{sC}
    s_mul_i32 s{sF}, s{sH}, 12
    s_add_u32 s{sF}, s{sF}, s{sC}
    s_mul_i32 s{sKAP}, s{sT2}, 12
    s_add_u32 s{sKAP}, s{sKAP}, s{sC}
    s_movk_i32 s{s4096}, 4096
    v_lshrrev_b32 v{l3}, 3, v{lane}
    v_and_b32 v{l7}, 7, v{lane}
    v_lshlrev_b32 v{t[1]}, 2, v0
    v_mov_b32 v{t[2]}, 0
    v_mov_b32 v{vxc}, 0
    v_cmp_gt_u32 vcc, 256, v0
    s_and_saveexec_b64 s[{sUSE}:{sUSE+1}], vcc
    ds_write_b32 v{t[1]}, v{t[2]}
    s_mov_b64 exec, s[{sUSE}:{sUSE+1}]
    s_mov_b32 s{sM1}, 0x22222222
    s_mov_b32 s{sM1+1}, 0x22222222
    s_mov_b32 s{sM2}, 0x44444444
    s_mov_b32 s{sM2+1}, 0x44444444
    s_mov_b32 s{sM3}, 0x88888888
    s_mov_b32 s{sM3+1}, 0x88888888
    s_mov_b32 s{sUSE}, 0x00ff00ff
    s_mov_b32 s{sUSE+1}, 0xff00ff00
    """)
    a(f"""
    v_and_b32 v{t[0]}, 1, v{lane}
    v_lshlrev_b32 v{t[0]}, 4, v{t[0]}
    v_mov_b32 v{t[1]}, 0xffff
    v_lshlrev_b32 v{t[0]}, v{t[0]}, v{t[1]}
    v_lshrrev_b32 v{t[1]}, 1, v{l7}
    """)
    for r in range(4):
        a(f"v_cmp_eq_u32 vcc, {r}, v{t[1]}\nv_cndmask_b32 v{M[r]}, 0, v{t[0]}, vcc")
    a(f"""
    s_mul_i32 s{sT0}, s{sC}, 288
    s_movk_i32 s{sCOUNT}, 288
    s_cmp_lt_u32 s{sC}, 13
    s_cbranch_scc1 Lrng
    s_mul_i32 s{sT0}, s{sC}, 120
    s_add_u32 s{sT0}, s{sT0}, {3744 - 13*120}
    s_movk_i32 s{sCOUNT}, 120
    s_cmp_lt_u32 s{sC}, 15
    s_cbranch_scc1 Lrng
    s_movk_i32 s{sCOUNT}, 112
    Lrng:
    s_add_u32 s{sT0}, s{sT0}, 61440
    s_lshl_b32 s{sT0}, s{sT0}, 8
    s_lshl_b32 s{sT1}, s{sH}, 24
    s_add_u32 s{sT0}, s{sT0}, s{sT1}
    s_mul_i32 s{sT1}, s{sWAVE}, {U*1024}
    v_lshl_add_u32 v{vVoff}, v{lane}, 4, s{sT1}
    v_bfe_u32 v{t[0]}, v{lane}, 2, 2
    v_lshrrev_b32 v{t[1]}, 4, v{lane}
    v_and_b32 v{t[2]}, 3, v{lane}
    v_lshl_add_u32 v{vKoff}, v{t[0]}, 8, s{sT1}
    v_lshl_add_u32 v{vKoff}, v{t[1]}, 6, v{vKoff}
    v_lshl_add_u32 v{vKoff}, v{t[2]}, 4, v{vKoff}
    """)
    a(f"""
    s_lshr_b32 s{sT1}, s{sC}, 2
    s_mul_i32 s{sT1}, s{sT1}, 144
    s_lshl_b32 s{sT2}, s{sWAVE}, 4
    s_add_u32 s{sT1}, s{sT1}, s{sT2}
    v_add_u32 v{t[3]}, s{sT1}, v{l3}
    s_and_b32 s{sT1}, s{sC}, 3
    s_lshl_b32 s{sT1}, s{sT1}, 7
    s_lshl_b32 s{sT2}, s{sH}, 9
    s_add_u32 s{sT1}, s{sT1}, s{sT2}
    v_lshl_add_u32 v{t[4]}, v{l7}, 4, s{sT1}
    v_lshl_add_u32 v{t[4]}, v{t[3]}, 13, v{t[4]}
    v_add_u32 v{t[5]}, 0x10000, v{t[4]}
    v_lshlrev_b32 v{t[3]}, 1, v{t[3]}
    v_lshlrev_b32 v{t[6]}, 4, v{lane}
    s_waitcnt lgkmcnt(0)
    s_load_dword s{sTAG}, s[30:31], 0
    s_mov_b32 s{SX}, s8
    s_mov_b32 s{SX+1}, s9
    s_movk_i32 s{SX+2}, 1152
    s_mov_b32 s{SX+3}, 0x20000
    s_mov_b32 s{SWQ}, s14
    s_mov_b32 s{SWQ+1}, s15
    s_mov_b32 s{SWQ+2}, {576*4096*2}
    s_mov_b32 s{SWQ+3}, 0x20000
    s_add_u32 s{SK}, s10, s{sT0}
    s_addc_u32 s{SK+1}, s11, 0
    s_lshl_b32 s{SK+2}, s{sCOUNT}, 8
    s_mov_b32 s{SK+3}, 0x20000
    """)
    stamp()
    XA = G; XB = G + 4; XV = G + 8
    a(f"""
    s_cmp_ge_u32 s{sWAVE}, 9
    s_cbranch_scc1 Lnowq
    buffer_load_dwordx4 {vr(XA,4)}, v{t[6]}, {srd(SX)}, 0 offen
    buffer_load_dwordx4 {vr(XB,4)}, v{t[6]}, {srd(SX)}, 0 offen offset:1024
    buffer_load_ushort v{XV}, v{t[3]}, {srd(SX)}, 0 offen
    buffer_load_ushort v{XV+1}, v{t[3]}, {srd(SX)}, 0 offen offset:16
    buffer_load_dwordx4 {vr(WQ,4)}, v{t[4]}, {srd(SWQ)}, 0 offen {nt}
    buffer_load_dwordx4 {vr(WQ+4,4)}, v{t[5]}, {srd(SWQ)}, 0 offen {nt}
    Lnowq:
    """)
    for u in range(k0): ld4(Kr + 4*u, vKoff, SK, 1024*u)
    a(f"""
    s_add_u32 s{SV}, s12, s{sT0}
    s_addc_u32 s{SV+1}, s13, 0
    s_lshl_b32 s{SV+2}, s{sCOUNT}, 8
    s_mov_b32 s{SV+3}, 0x20000
    s_mov_b32 s{SWS}, s30
    s_mov_b32 s{SWS+1}, s31
    s_mov_b32 s{SWS+2}, {WS_BYTES}
    s_mov_b32 s{SWS+3}, 0x20000
    s_cmp_lt_u32 s{sC}, 13
    s_cselect_b32 s{SWT}, s26, s16
    s_cselect_b32 s{SWT+1}, s27, s17
    s_mov_b32 s{sT1}, {4096*576*2}
    s_cselect_b32 s{SWT+2}, {4608*576*2}, s{sT1}
    s_mov_b32 s{SWT+3}, 0x20000
    s_mov_b32 s{SWR}, s20
    s_mov_b32 s{SWR+1}, s21
    s_movk_i32 s{SWR+2}, 1152
    s_mov_b32 s{SWR+3}, 0x20000
    s_mov_b32 s{SOUT}, s28
    s_mov_b32 s{SOUT+1}, s29
    s_movk_i32 s{SOUT+2}, 1152
    s_mov_b32 s{SOUT+3}, 0x20000
    s_barrier
    """)
    a(f"""
    s_cmp_ge_u32 s{sWAVE}, 9
    s_cbranch_scc1 Lnoq
    s_mov_b32 s{sT1}, 0x3f803f80
    v_mov_b32 v{t[0]}, 0
    v_mov_b32 v{t[1]}, 0
    s_waitcnt vmcnt({4+k0})
    """)
    for i in range(8):
        a(f"v_dot2_f32_bf16 v{t[0]}, v{XA+i}, s{sT1}, v{t[0]}")
        a(f"v_dot2_f32_bf16 v{t[1]}, v{XA+i}, v{XA+i}, v{t[1]}")
    row_allreduce("v_add_f32", [t[0], t[1]])
    xor16_32("v_add_f32", t[0], t[2])
    xor16_32("v_add_f32", t[1], t[3])
    ln_scalars(t[0], t[1], t[2], t[3], t[4])
    a(f"s_waitcnt vmcnt({2+k0})\nv_lshlrev_b32 v{XV}, 16, v{XV}\nv_lshlrev_b32 v{XV+1}, 16, v{XV+1}")
    ln_apply([XV, XV+1], t[2], t[3], t[4], [t[5], t[6]])
    for i in range(2):
        a(f"v_cvt_pk_bf16_f32 v{XV+i}, v{XV+i}, v{XV+i}")
        bbuild(B + 4*i, XV + i)
    a(f"""
    v_bfe_u32 v{t[0]}, v{lane}, 4, 1
    v_lshlrev_b32 v{t[0]}, 7, v{t[0]}
    v_lshl_add_u32 v{t[0]}, v{l7}, 2, v{t[0]}
    s_waitcnt vmcnt({k0})
    """)
    mfma(D, WQ, B, "0"); mfma(D, WQ+4, B+4)
    a(f"s_mov_b64 exec, s[{sUSE}:{sUSE+1}]")
    for r in range(4): a(f"ds_add_f32 v{t[0]}, v{D+r} offset:{L_ACCQ + 32*r}")
    a(f"""
    s_mov_b64 exec, -1
    Lnoq:
    s_waitcnt lgkmcnt(0)
    s_add_u32 s{sTAG}, s{sTAG}, 1
    s_barrier
    """)
    stamp()
    a(f"""
    s_cmp_lg_u32 s{sWAVE}, 0
    s_cbranch_scc1 Lnoqp
    v_lshlrev_b32 v{t[0]}, 2, v{lane}
    ds_read_b32 v{G}, v{t[0]} offset:{L_ACCQ}
    s_lshl_b32 s{sT1}, s{sL}, 9
    s_add_u32 s{sT1}, s{sT1}, {QP}
    v_lshlrev_b32 v{t[0]}, 3, v{lane}
    v_mov_b32 v{G+1}, s{sTAG}
    s_waitcnt lgkmcnt(0)
    buffer_store_dwordx2 {vr(G,2)}, v{t[0]}, {srd(SWS)}, s{sT1} offen sc1
    Lnoqp:
    """)
    for u in range(k0, U): ld4(Kr + 4*u, vKoff, SK, 1024*u)
    a("s_barrier")
    vWO = vxc
    def wo_addr():
        a(f"""
        v_bfe_u32 v{t[0]}, v{lane}, 4, 1
        v_lshlrev_b32 v{t[0]}, 7, v{t[0]}
        v_lshrrev_b32 v{t[1]}, 5, v{lane}
        v_lshl_add_u32 v{t[0]}, v{t[1]}, 3, v{t[0]}
        v_and_b32 v{t[1]}, 1, v{l3}
        v_add_u32 v{t[0]}, v{t[0]}, v{t[1]}
        s_lshl_b32 s{sT1}, s{sH}, 8
        s_lshl_b32 s{sT2}, s{sWAVE}, 4
        s_add_u32 s{sT1}, s{sT1}, s{sT2}
        v_add_u32 v{t[0]}, s{sT1}, v{t[0]}
        v_mul_u32_u24 v{t[0]}, 1152, v{t[0]}
        s_sub_u32 s{sT1}, s{sC}, 13
        s_mul_i32 s{sT1}, s{sT1}, 384
        v_lshl_add_u32 v{t[1]}, v{l7}, 4, s{sT1}
        v_add_u32 v{vWO}, v{t[0]}, v{t[1]}
        """)
    def wo_load(i):
        rd, cb = i // 3, i % 3
        ld4(WOr[i], vWO, SWT, 2304*rd + 128*cb)
    def vloads(lo, hi):
        for u in range(lo, hi): ld4(Vr + 4*u, vVoff, SV, 1024*u)
    a(f"""
    s_cmp_ge_u32 s{sWAVE}, 2
    s_cbranch_scc1 Lnoqg
    s_lshl_b32 s{sT1}, s{sH}, 13
    s_lshl_b32 s{sT2}, s{sWAVE}, 10
    s_add_u32 s{sT1}, s{sT1}, s{sT2}
    s_add_u32 s{sT1}, s{sT1}, {QP}
    v_lshl_add_u32 v{t[8]}, v{lane}, 4, s{sT1}
    """)
    def qg():
        for kq in range(4): ld4(G + 4*kq, t[8], SWS, 2048*kq, "sc1")
    poll(qg, [G+1, G+3, G+5, G+7, G+9, G+11, G+13, G+15], v0n, between=lambda: vloads(0, v0n), name="q")
    a(f"""
    v_add_f32 v{G}, v{G}, v{G+4}
    v_add_f32 v{G+2}, v{G+2}, v{G+6}
    v_add_f32 v{G+8}, v{G+8}, v{G+12}
    v_add_f32 v{G+10}, v{G+10}, v{G+14}
    v_add_f32 v{G}, v{G}, v{G+8}
    v_add_f32 v{G+2}, v{G+2}, v{G+10}
    v_cvt_pk_bf16_f32 v{G}, v{G}, v{G+2}
    v_lshlrev_b32 v{t[0]}, 2, v0
    ds_write_b32 v{t[0]}, v{G} offset:{L_Q}
    s_branch Lqgd
    Lnoqg:
    """)
    vloads(0, v0n)
    a("Lqgd:")
    if wo_early:
        a(f"""
        s_cmp_lt_u32 s{sC}, 13
        s_cbranch_scc1 Lnwo1
        s_cmp_ge_u32 s{sWAVE}, 8
        s_cbranch_scc1 Lnwo1
        """)
        wo_addr()
        for i in range(wo_early): wo_load(i)
        a("Lnwo1:")
    a(f"""
    v_bfe_u32 v{t[0]}, v{lane}, 3, 1
    v_lshlrev_b32 v{t[0]}, 8, v{t[0]}
    v_lshrrev_b32 v{t[1]}, 4, v{lane}
    v_lshl_add_u32 v{t[0]}, v{t[1]}, 6, v{t[0]}
    v_and_b32 v{t[1]}, 3, v{lane}
    v_lshl_add_u32 v{t[0]}, v{t[1]}, 4, v{t[0]}
    v_bfe_i32 v{t[9]}, v{lane}, 2, 1
    s_waitcnt lgkmcnt(0)
    s_barrier
    """)
    stamp()
    a(f"""
    ds_read_b128 {vr(G,4)}, v{t[0]} offset:{L_Q}
    s_mul_i32 s{sT1}, s{sWAVE}, {4*U}
    v_lshrrev_b32 v{t[8]}, 4, v{lane}
    v_and_b32 v{t[7]}, 4, v{lane}
    v_add3_u32 v{t[8]}, v{t[8]}, v{t[7]}, s{sT1}
    s_waitcnt lgkmcnt(0)
    """)
    for r in range(4):
        a(f"v_bfi_b32 v{G+4+r}, v{t[9]}, 0, v{G+r}")
        a(f"v_and_b32 v{G+8+r}, v{t[9]}, v{G+r}")
    DD = [D, D2, D3]
    for u in range(3):
        a(f"s_waitcnt vmcnt({U - 2*u - 2 + v0n})")
        mfma(DD[u], Kr + 8*u, G+4, "0"); mfma(DD[u], Kr + 8*u + 4, G+8)
    S = [t[0], t[1], t[2]]
    for u in range(3):
        d = DD[u]
        a(f"""
        v_cndmask_b32 v{S[u]}, v{d}, v{d+1}, s[{sM1}:{sM1+1}]
        v_cndmask_b32 v{S[u]}, v{S[u]}, v{d+2}, s[{sM2}:{sM2+1}]
        v_cndmask_b32 v{S[u]}, v{S[u]}, v{d+3}, s[{sM3}:{sM3+1}]
        """)
    for qp in ("[1,0,3,2]", "[2,3,0,1]"):
        for u in range(3):
            a(f"v_add_f32_dpp v{S[u]}, v{S[u]}, v{S[u]} quad_perm:{qp} row_mask:0xf bank_mask:0xf")
    for u in range(3): bf16r(S[u], S[u])
    for u in range(3): a(f"v_mul_f32 v{S[u]}, {hx(f2u(128 ** -0.5))}, v{S[u]}")
    for u in range(3): bf16r(S[u], S[u])
    a(f"v_mov_b32 v{t[7]}, {hx(f2u(-1e30))}")
    for u in range(3):
        a(f"v_cmp_gt_u32 vcc, s{sCOUNT}, v{t[8]}\nv_cndmask_b32 v{S[u]}, v{t[7]}, v{S[u]}, vcc")
        if u < 2: a(f"v_add_u32 v{t[8]}, 8, v{t[8]}")
    mw = G; lw = G + 1
    a(f"""
    v_max3_f32 v{mw}, v{S[0]}, v{S[1]}, v{S[2]}
    v_max_f32_dpp v{mw}, v{mw}, v{mw} row_half_mirror row_mask:0xf bank_mask:0xf
    """)
    xor16_32("v_max_f32", mw, t[3])
    LOG2E = hx(f2u(1.4426950408889634))
    for u in range(3): a(f"v_sub_f32 v{S[u]}, v{S[u]}, v{mw}")
    for u in range(3): a(f"v_mul_f32 v{S[u]}, {LOG2E}, v{S[u]}")
    for u in range(3): a(f"v_exp_f32 v{S[u]}, v{S[u]}")
    a(f"""
    v_add_f32 v{lw}, v{S[0]}, v{S[1]}
    v_add_f32 v{lw}, v{lw}, v{S[2]}
    v_add_f32_dpp v{lw}, v{lw}, v{lw} row_half_mirror row_mask:0xf bank_mask:0xf
    """)
    xor16_32("v_add_f32", lw, t[3])
    a(f"""
    s_lshl_b32 s{sT1}, s{sWAVE}, 3
    v_lshlrev_b32 v{t[3]}, 4, v{lane}
    v_add_u32 v{t[3]}, s{sT1}, v{t[3]}
    s_mov_b64 exec, 0x101
    ds_write_b64 v{t[3]}, {vr(mw,2)} offset:{L_STAT}
    s_mov_b64 exec, -1
    s_waitcnt lgkmcnt(0)
    s_barrier
    """)
    stamp()
    a(f"""
    s_cmp_lg_u32 s{sWAVE}, 0
    s_cbranch_scc1 Lnosp
    v_and_b32 v{t[3]}, 31, v{lane}
    v_lshlrev_b32 v{t[3]}, 3, v{t[3]}
    ds_read_b64 {vr(G+4,2)}, v{t[3]} offset:{L_STAT}
    v_and_b32 v{t[4]}, 15, v{lane}
    v_cmp_gt_u32 vcc, 12, v{t[4]}
    s_waitcnt lgkmcnt(0)
    v_cndmask_b32 v{vmw}, v{t[7]}, v{G+4}, vcc
    v_cndmask_b32 v{G+5}, 0, v{G+5}, vcc
    v_mov_b32 v{G+8}, v{vmw}
    """)
    row_allreduce("v_max_f32", [G+8])
    a(f"""
    v_sub_f32 v{G+10}, v{vmw}, v{G+8}
    v_mul_f32 v{G+10}, {LOG2E}, v{G+10}
    v_exp_f32 v{G+10}, v{G+10}
    v_mul_f32 v{G+10}, v{G+10}, v{G+5}
    """)
    row_allreduce("v_add_f32", [G+10])
    a(f"""
    v_mov_b32 v{G+9}, s{sTAG}
    v_mov_b32 v{G+11}, s{sTAG}
    s_lshl_b32 s{sT1}, s{sL}, 7
    s_add_u32 s{sT1}, s{sT1}, {ST}
    s_mov_b64 exec, 0x10001
    buffer_store_dwordx4 {vr(G+8,4)}, v{lane}, {srd(SWS)}, s{sT1} offen sc1
    s_mov_b64 exec, -1
    Lnosp:
    """)
    vloads(v0n, U)
    for u in range(3):
        a(f"v_cvt_pk_bf16_f32 v{S[u]}, v{S[u]}, v{S[u]}")
    for u in range(3):
        bbuild(B + 8*u, S[u], [None, None, "row_half_mirror", "row_half_mirror"])
        bbuild(B + 8*u + 4, S[u], ["row_half_mirror", "row_half_mirror", None, None])
    a("s_barrier")
    def sg():
        a(f"buffer_load_dwordx4 {vr(G,4)}, v{t[8]}, {srd(SWS)}, 0 offen sc1")
    a(f"""
    s_cmp_lg_u32 s{sWAVE}, 0
    s_cbranch_scc1 Lnosg
    s_lshl_b32 s{sT1}, s{sH}, 11
    s_add_u32 s{sT1}, s{sT1}, {ST}
    v_and_b32 v{t[8]}, 15, v{lane}
    v_lshl_add_u32 v{t[8]}, v{t[8]}, 7, s{sT1}
    v_and_b32 v{t[9]}, 16, v{lane}
    v_add_u32 v{t[8]}, v{t[8]}, v{t[9]}
    """)
    sg()
    a("Lnosg:")
    def gu_load(i):
        if i > 0:
            a(f"v_add_co_u32 v{vA}, vcc, 9216, v{vA}\nv_addc_co_u32 v{vA+1}, vcc, 0, v{vA+1}, vcc")
        a(f"global_load_dwordx4 {vr(GU+4*i,4)}, {vr(vA,2)}, off {nt}")
    GUMASK = 0x77777777
    a(f"""
    s_cmp_lt_u32 s{sC}, 12
    s_cbranch_scc1 Lgu1
    s_cmp_eq_u32 s{sC}, 12
    s_cbranch_scc1 Lnop1
    s_cmp_ge_u32 s{sWAVE}, 8
    s_cbranch_scc1 Lnop1
    """)
    if not wo_early: wo_addr()
    for i in range(wo_early, 12): wo_load(i)
    assert 12 - wo_early >= g0
    a(f"""
    s_branch Lpv
    Lnop1:
    s_waitcnt vmcnt(0)
    s_branch Lpv
    Lgu1:
    s_mul_i32 s{sT1}, s{sWAVE}, 48
    v_mul_u32_u24 v{t[3]}, 6, v{l3}
    v_add_u32 v{t[3]}, s{sT1}, v{t[3]}
    v_mul_u32_u24 v{t[3]}, 9216, v{t[3]}
    s_mul_i32 s{sT1}, s{sF}, 48
    v_and_b32 v{t[4]}, 3, v{lane}
    v_lshl_add_u32 v{t[4]}, v{t[4]}, 4, s{sT1}
    v_add_u32 v{t[3]}, v{t[3]}, v{t[4]}
    v_and_b32 v{t[4]}, 4, v{lane}
    v_cmp_ne_u32 vcc, 0, v{t[4]}
    v_mov_b32 v{vA}, s22
    v_mov_b32 v{vA+1}, s23
    v_mov_b32 v{t[4]}, s24
    v_mov_b32 v{t[5]}, s25
    v_cndmask_b32 v{vA}, v{vA}, v{t[4]}, vcc
    v_cndmask_b32 v{vA+1}, v{vA+1}, v{t[5]}, vcc
    v_add_co_u32 v{vA}, vcc, v{vA}, v{t[3]}
    v_addc_co_u32 v{vA+1}, vcc, 0, v{vA+1}, vcc
    s_mov_b32 exec_lo, {hx(GUMASK)}
    s_mov_b32 exec_hi, {hx(GUMASK)}
    """)
    for i in range(g0): gu_load(i)
    a("s_mov_b64 exec, -1\nLpv:")
    for u in range(U):
        a(f"s_waitcnt vmcnt({U - 1 - u + g0})")
        mfma(D, Vr + 4*u, B + 4*u, "0" if u == 0 else None)
    a(f"""
    s_lshl_b32 s{sT1}, s{sWAVE}, 10
    v_lshl_add_u32 v{t[3]}, v{lane}, 4, s{sT1}
    ds_write_b128 v{t[3]}, {vr(D,4)} offset:{L_SLAB}
    """)
    a(f"""
    s_cmp_lg_u32 s{sWAVE}, 0
    s_cbranch_scc1 Lnofac
    """)
    first = [True]
    def sg2():
        if first[0]: first[0] = False
        else: sg()
    poll(sg2, [G+1, G+3], g0, name="s")
    a(f"v_mov_b32 v{G+1}, v{G}")
    row_allreduce("v_max_f32", [G+1])
    a(f"""
    v_sub_f32 v{G}, v{G}, v{G+1}
    v_sub_f32 v{vmw}, v{vmw}, v{G+1}
    v_mul_f32 v{G}, {LOG2E}, v{G}
    v_mul_f32 v{vmw}, {LOG2E}, v{vmw}
    v_exp_f32 v{G}, v{G}
    v_exp_f32 v{vmw}, v{vmw}
    v_mul_f32 v{G}, v{G}, v{G+2}
    """)
    row_allreduce("v_add_f32", [G])
    a(f"""
    v_rcp_f32 v{G}, v{G}
    v_and_b32 v{t[3]}, 16, v{lane}
    v_lshlrev_b32 v{t[3]}, 2, v{t[3]}
    v_and_b32 v{t[4]}, 3, v{lane}
    v_lshl_add_u32 v{t[3]}, v{t[4]}, 4, v{t[3]}
    v_and_b32 v{t[4]}, 12, v{lane}
    v_add_u32 v{t[3]}, v{t[3]}, v{t[4]}
    v_mul_f32 v{G}, v{G}, v{vmw}
    ds_write_b32 v{t[3]}, v{G} offset:{L_FAC}
    Lnofac:
    s_waitcnt lgkmcnt(0)
    s_barrier
    """)
    stamp()
    def pack_store(r, sbase):
        a(f"""
        v_mov_b32_dpp v{r+1}, v{r} quad_perm:[1,0,3,2] row_mask:0xf bank_mask:0xf
        v_cvt_pk_bf16_f32 v{r}, v{r}, v{r+1}
        v_mov_b32 v{r+1}, s{sTAG}
        v_lshlrev_b32 v{t[3]}, 2, v{lane}
        s_mov_b32 exec_lo, 0x55555555
        s_mov_b32 exec_hi, 0x55555555
        buffer_store_dwordx2 {vr(r,2)}, v{t[3]}, {srd(SWS)}, s{sbase} offen sc1
        s_mov_b64 exec, -1
        """)
    a(f"""
    s_cmp_ge_u32 s{sWAVE}, 4
    s_cbranch_scc1 Lnoop
    s_setprio 3
    v_lshrrev_b32 v{t[4]}, 4, v{lane}
    v_and_b32 v{t[5]}, 15, v{lane}
    s_lshl_b32 s{sT1}, s{sWAVE}, 8
    v_lshl_add_u32 v{t[3]}, v{t[5]}, 4, s{sT1}
    v_lshl_add_u32 v{t[3]}, v{t[4]}, 10, v{t[3]}
    v_and_b32 v{t[5]}, 8, v{lane}
    v_lshlrev_b32 v{t[5]}, 3, v{t[5]}
    v_lshl_add_u32 v{t[5]}, v{t[4]}, 4, v{t[5]}
    ds_read_b128 {vr(G,4)}, v{t[3]} offset:{L_SLAB}
    ds_read_b128 {vr(G+4,4)}, v{t[3]} offset:{L_SLAB+4096}
    ds_read_b128 {vr(G+8,4)}, v{t[3]} offset:{L_SLAB+8192}
    ds_read_b128 {vr(G+12,4)}, v{t[5]} offset:{L_FAC}
    s_lshl_b32 s{sT2}, s{sL}, 10
    s_add_u32 s{sT1}, s{sT1}, s{sT2}
    s_add_u32 s{sT1}, s{sT1}, {OP}
    s_waitcnt lgkmcnt(0)
    """)
    for r in range(4): a(f"v_mul_f32 v{G+r}, v{G+r}, v{G+12}")
    for r in range(4): a(f"v_fmac_f32 v{G+r}, v{G+4+r}, v{G+13}")
    for r in range(4): a(f"v_fmac_f32 v{G+r}, v{G+8+r}, v{G+14}")
    treduce4(G)
    pack_store(G, sT1)
    a(f"""
    s_setprio 0
    Lnoop:
    """)
    stamp()
    a(f"""
    s_cmp_lt_u32 s{sC}, 12
    s_cbranch_scc1 LF
    s_cmp_eq_u32 s{sC}, 12
    s_cbranch_scc1 Lfin
    """)
    a(f"""
    s_cmp_ge_u32 s{sWAVE}, 8
    s_cbranch_scc1 LWb
    v_lshrrev_b32 v{t[4]}, 4, v{lane}
    v_and_b32 v{t[5]}, 15, v{lane}
    s_lshl_b32 s{sT1}, s{sH}, 14
    s_lshl_b32 s{sT2}, s{sWAVE}, 7
    s_add_u32 s{sT1}, s{sT1}, s{sT2}
    s_add_u32 s{sT1}, s{sT1}, {OP}
    v_lshl_add_u32 v{t[8]}, v{t[5]}, 3, s{sT1}
    v_lshl_add_u32 v{t[8]}, v{t[4]}, 10, v{t[8]}
    v_add_u32 v{t[9]}, 8192, v{t[8]}
    v_and_b32 v{t[5]}, 8, v{lane}
    v_lshlrev_b32 v{t[5]}, 1, v{t[5]}
    v_mov_b32 v{t[4]}, 0x3f80
    v_lshlrev_b32 v{G+8}, v{t[5]}, v{t[4]}
    v_mov_b32 v{G+9}, v{G+8}
    v_mov_b32 v{G+10}, v{G+8}
    v_mov_b32 v{G+11}, v{G+8}
    v_bfe_u32 v{t[4]}, v{lane}, 4, 1
    v_lshlrev_b32 v{t[4]}, 7, v{t[4]}
    v_lshl_add_u32 v{t[4]}, v{l7}, 4, v{t[4]}
    v_lshrrev_b32 v{t[5]}, 5, v{lane}
    v_lshl_add_u32 v{t[4]}, v{t[5]}, 8, v{t[4]}
    s_lshl_b32 s{sT1}, s{sWAVE}, 9
    v_add_u32 v{t[7]}, s{sT1}, v{t[4]}
    """)
    def ag():
        a(f"buffer_load_dwordx2 {vr(G,2)}, v{t[8]}, {srd(SWS)}, 0 offen sc1")
        a(f"buffer_load_dwordx2 {vr(G+2,2)}, v{t[8]}, {srd(SWS)}, s{s4096} offen sc1")
        a(f"buffer_load_dwordx2 {vr(G+4,2)}, v{t[9]}, {srd(SWS)}, 0 offen sc1")
        a(f"buffer_load_dwordx2 {vr(G+6,2)}, v{t[9]}, {srd(SWS)}, s{s4096} offen sc1")
    poll(ag, [G+1, G+3, G+5, G+7], 0, name="a")
    stamp()
    a(f"v_mov_b32 v{G+1}, v{G+2}\nv_mov_b32 v{G+2}, v{G+4}\nv_mov_b32 v{G+3}, v{G+6}")
    mfma(G+12, G, G+8, "0")
    for rd in range(4):
        a(f"v_cvt_pk_bf16_f32 v{G+12+rd}, v{G+12+rd}, v{G+12+rd}")
        bbuild(B + 4*rd, G + 12 + rd)
        for cb in range(3):
            mfma(DD[cb], WOr[3*rd + cb], B + 4*rd, "0" if rd == 0 else None)
    a(f"s_mov_b64 exec, s[{sUSE}:{sUSE+1}]")
    for cb in range(3):
        a(f"ds_write_b128 v{t[7]}, {vr(DD[cb],4)} offset:{L_SLAB2 + 4096*cb}")
    a(f"""
    s_mov_b64 exec, -1
    LWb:
    s_waitcnt lgkmcnt(0)
    s_barrier
    s_cmp_ge_u32 s{sWAVE}, 3
    s_cbranch_scc1 Lfin
    s_lshl_b32 s{sT1}, s{sWAVE}, 12
    v_lshl_add_u32 v{t[3]}, v{lane}, 4, s{sT1}
    """)
    for j in range(4): a(f"ds_read_b128 {vr(G+4*j,4)}, v{t[3]} offset:{L_SLAB2 + 1024*j}")
    a(f"""
    s_mul_i32 s{sT1}, s{sH}, 2304
    s_sub_u32 s{sT2}, s{sC}, 13
    s_mul_i32 s{sT2}, s{sT2}, 3
    s_add_u32 s{sT2}, s{sT2}, s{sWAVE}
    s_lshl_b32 s{sT2}, s{sT2}, 8
    s_add_u32 s{sT1}, s{sT1}, s{sT2}
    s_add_u32 s{sT1}, s{sT1}, {AP}
    s_waitcnt lgkmcnt(0)
    """)
    for r in range(4): a(f"v_add_f32 v{G+r}, v{G+r}, v{G+4+r}")
    for r in range(4): a(f"v_add_f32 v{G+8+r}, v{G+8+r}, v{G+12+r}")
    for r in range(4): a(f"v_add_f32 v{G+r}, v{G+r}, v{G+8+r}")
    treduce4(G)
    pack_store(G, sT1)
    stamp()
    a("s_branch Lfin")
    nstamp[0] -= 2 if debug else 0
    a(f"""
    LF:
    s_mov_b32 exec_lo, {hx(GUMASK)}
    s_mov_b32 exec_hi, {hx(GUMASK)}
    """)
    for i in range(g0, 6): gu_load(i)
    a(f"""
    s_mov_b64 exec, -1
    s_cmp_ge_u32 s{sWAVE}, 9
    s_cbranch_scc1 LFnb
    s_mul_i32 s{sT1}, s{sF}, 24
    v_add_u32 v{t[3]}, s{sT1}, v{l3}
    v_mul_u32_u24 v{t[3]}, 1152, v{t[3]}
    s_lshl_b32 s{sT1}, s{sWAVE}, 7
    v_lshl_add_u32 v{t[4]}, v{l7}, 4, s{sT1}
    v_add_u32 v{t[3]}, v{t[3]}, v{t[4]}
    s_movk_i32 s{sT1}, 9216
    s_movk_i32 s{sT2}, 18432
    buffer_load_dwordx4 {vr(DN,4)}, v{t[3]}, {srd(SWT)}, 0 offen {nt}
    buffer_load_dwordx4 {vr(DN+4,4)}, v{t[3]}, {srd(SWT)}, s{sT1} offen {nt}
    buffer_load_dwordx4 {vr(DN+8,4)}, v{t[3]}, {srd(SWT)}, s{sT2} offen {nt}
    """)
    a(f"""
    v_and_b32 v{t[4]}, 8, v{lane}
    v_lshl_add_u32 v{t[4]}, v{t[4]}, 2, v{l7}
    v_lshrrev_b32 v{t[5]}, 4, v{lane}
    v_lshl_add_u32 v{t[4]}, v{t[5]}, 3, v{t[4]}
    s_lshl_b32 s{sT1}, s{sWAVE}, 6
    v_add_u32 v{t[7]}, s{sT1}, v{t[4]}
    v_lshlrev_b32 v{t[4]}, 1, v{t[7]}
    buffer_load_ushort v{vxc}, v{t[4]}, {srd(SX)}, 0 offen
    v_lshlrev_b32 v{t[7]}, 2, v{t[7]}
    v_mul_u32_u24 v{t[8]}, 2304, v{t[5]}
    v_and_b32 v{t[4]}, 15, v{lane}
    v_lshl_add_u32 v{t[8]}, v{t[4]}, 4, v{t[8]}
    s_lshl_b32 s{sT1}, s{sWAVE}, 8
    s_add_u32 s{sT1}, s{sT1}, {AP}
    v_add_u32 v{t[8]}, s{sT1}, v{t[8]}
    v_add_u32 v{t[9]}, 18432, v{t[8]}
    s_movk_i32 s{sT1}, 9216
    v_and_b32 v{t[4]}, 1, v{lane}
    v_lshlrev_b32 v{t[4]}, 4, v{t[4]}
    v_mov_b32 v{t[5]}, 0x3f80
    v_lshlrev_b32 v{t[4]}, v{t[4]}, v{t[5]}
    v_bfe_i32 v{t[5]}, v{lane}, 1, 1
    v_bfi_b32 v{B}, v{t[5]}, 0, v{t[4]}
    v_and_b32 v{B+1}, v{t[5]}, v{t[4]}
    v_mov_b32 v{B+2}, v{B}
    v_mov_b32 v{B+3}, v{B+1}
    s_mov_b32 s{sM1}, 0x00f000f0
    s_mov_b32 s{sM1+1}, 0x00f000f0
    s_mov_b32 s{sM2}, 0x0f000f00
    s_mov_b32 s{sM2+1}, 0x0f000f00
    s_mov_b32 s{sM3}, 0xf000f000
    s_mov_b32 s{sM3+1}, 0xf000f000
    """)
    def bg():
        a(f"buffer_load_dwordx4 {vr(G,4)}, v{t[8]}, {srd(SWS)}, 0 offen sc1")
        a(f"buffer_load_dwordx4 {vr(G+4,4)}, v{t[8]}, {srd(SWS)}, s{sT1} offen sc1")
        a(f"buffer_load_dwordx4 {vr(G+8,4)}, v{t[9]}, {srd(SWS)}, 0 offen sc1")
        a(f"buffer_load_dwordx4 {vr(G+12,4)}, v{t[9]}, {srd(SWS)}, s{sT1} offen sc1")
    poll(bg, [G+1, G+3, G+5, G+7, G+9, G+11, G+13, G+15], 0, name="b")
    stamp()
    a(f"""
    v_mov_b32 v{G+1}, v{G+2}
    v_mov_b32 v{G+2}, v{G+4}
    v_mov_b32 v{G+3}, v{G+6}
    v_mov_b32 v{G+9}, v{G+10}
    v_mov_b32 v{G+10}, v{G+12}
    v_mov_b32 v{G+11}, v{G+14}
    """)
    mfma(D, G, B, "0"); mfma(D, G+8, B)
    a(f"""
    v_lshlrev_b32 v{vxc}, 16, v{vxc}
    v_cndmask_b32 v{vh}, v{D}, v{D+1}, s[{sM1}:{sM1+1}]
    v_cndmask_b32 v{vh}, v{vh}, v{D+2}, s[{sM2}:{sM2+1}]
    v_cndmask_b32 v{vh}, v{vh}, v{D+3}, s[{sM3}:{sM3+1}]
    """)
    bf16r(vh, vh)
    a(f"v_add_f32 v{vh}, v{vh}, v{vxc}")
    bf16r(vh, vh)
    a(f"""
    ds_write_b32 v{t[7]}, v{vh} offset:{L_H}
    v_mov_b32 v{t[0]}, v{vh}
    v_mul_f32 v{t[1]}, v{vh}, v{vh}
    """)
    row_allreduce("v_add_f32", [t[0], t[1]])
    a(f"""
    v_mov_b32 v{t[2]}, 0
    s_mov_b32 exec_lo, 0x00010001
    s_mov_b32 exec_hi, 0x00010001
    ds_add_f32 v{t[2]}, v{t[0]} offset:{L_LNST}
    ds_add_f32 v{t[2]}, v{t[1]} offset:{L_LNST+4}
    s_mov_b64 exec, -1
    s_branch LFb6
    LFnb:
    """)
    a(f"""
    v_lshlrev_b32 v{t[3]}, 1, v{lane}
    """)
    for i in range(9): a(f"buffer_load_ushort v{DN+i}, v{t[3]}, {srd(SWR)}, 0 offen offset:{128*i}")
    a(f"""
    s_waitcnt vmcnt(0)
    LFb6:
    s_mul_i32 s{sT1}, s{sWAVE}, 192
    v_mul_u32_u24 v{t[3]}, 24, v{l3}
    v_add_u32 v{t[3]}, s{sT1}, v{t[3]}
    v_mov_b32 v{t[2]}, 0
    s_waitcnt lgkmcnt(0)
    s_barrier
    ds_read_b64 {vr(G+6,2)}, v{t[2]} offset:{L_LNST}
    ds_read_b64 {vr(G,2)}, v{t[3]} offset:{L_H}
    ds_read_b64 {vr(G+2,2)}, v{t[3]} offset:{L_H+8}
    ds_read_b64 {vr(G+4,2)}, v{t[3]} offset:{L_H+16}
    v_bfe_u32 v{t[7]}, v{lane}, 4, 1
    v_lshlrev_b32 v{t[7]}, 7, v{t[7]}
    v_lshl_add_u32 v{t[7]}, v{l7}, 4, v{t[7]}
    s_waitcnt lgkmcnt(0)
    """)
    vmean, vden, vrinv = vmw, vKoff, vVoff
    ln_scalars(G+6, G+7, vmean, vden, vrinv)
    ln_apply([G+i for i in range(6)], vmean, vden, vrinv, [G+8+i for i in range(6)])
    for i in range(6):
        a(f"v_cvt_pk_bf16_f32 v{G+i}, v{G+i}, v{G+i}")
        bbuild(B + 4*i, G + i)
        mfma(D, GU + 4*i, B + 4*i, "0" if i == 0 else None)
    a(f"s_mov_b64 exec, s[{sUSE}:{sUSE+1}]")
    for r in range(3): a(f"ds_add_f32 v{t[7]}, v{D+r} offset:{L_ACCGU + 4*r}")
    a(f"""
    s_mov_b64 exec, -1
    v_and_b32 v{t[3]}, 3, v{lane}
    v_lshlrev_b32 v{t[3]}, 2, v{t[3]}
    v_lshl_add_u32 v{t[3]}, v{l3}, 4, v{t[3]}
    s_waitcnt lgkmcnt(0)
    s_barrier
    """)
    stamp()
    a(f"""
    s_cmp_ge_u32 s{sWAVE}, 9
    s_cbranch_scc1 LFc
    ds_read2_b32 {vr(G,2)}, v{t[3]} offset0:{L_ACCGU//4} offset1:{L_ACCGU//4 + 32}
    s_mul_i32 s{sT1}, s{sF}, 2304
    s_lshl_b32 s{sT2}, s{sWAVE}, 8
    s_add_u32 s{sT1}, s{sT1}, s{sT2}
    s_add_u32 s{sT1}, s{sT1}, {YP}
    v_lshrrev_b32 v{t[4]}, 4, v{lane}
    v_lshlrev_b32 v{t[4]}, 6, v{t[4]}
    v_lshl_add_u32 v{t[4]}, v{l7}, 3, v{t[4]}
    s_waitcnt lgkmcnt(0)
    """)
    bf16r(G, G); bf16r(G+1, G+1)
    a(f"""
    v_mul_f32 v{G+2}, {hx(f2u(-1.4426950408889634))}, v{G}
    v_exp_f32 v{G+2}, v{G+2}
    v_add_f32 v{G+2}, 1.0, v{G+2}
    v_rcp_f32 v{G+2}, v{G+2}
    v_mul_f32 v{G}, v{G}, v{G+2}
    """)
    bf16r(G, G)
    a(f"v_mul_f32 v{G}, v{G}, v{G+1}\nv_cvt_pk_bf16_f32 v{G}, v{G}, v{G}")
    for rho in range(3):
        bbuild(B + 4*rho, G, [f"quad_perm:[{rho},{rho},{rho},{rho}]"] * 4)
        mfma(D, DN + 4*rho, B + 4*rho, "0" if rho == 0 else None)
    a(f"""
    v_permlane32_swap_b32 v{D}, v{D+1}
    v_permlane32_swap_b32 v{D+2}, v{D+3}
    v_add_f32_dpp v{D}, v{D+1}, v{D} row_ror:8 row_mask:0xf bank_mask:0xf
    v_add_f32_dpp v{D+2}, v{D+3}, v{D+2} row_ror:8 row_mask:0xf bank_mask:0xf
    v_cvt_pk_bf16_f32 v{D}, v{D}, v{D+2}
    v_mov_b32 v{D+1}, s{sTAG}
    s_mov_b32 exec_lo, 0x00ff00ff
    s_mov_b32 exec_hi, 0x00ff00ff
    buffer_store_dwordx2 {vr(D,2)}, v{t[4]}, {srd(SWS)}, s{sT1} offen sc1
    s_mov_b64 exec, -1
    """)
    stamp()
    a(f"""
    s_waitcnt vmcnt(0)
    s_barrier
    s_branch Lfin
    LFc:
    s_cmp_lg_u32 s{sWAVE}, 9
    s_cbranch_scc1 LFskip
    s_cmp_ge_u32 s{sKAP}, 18
    s_cbranch_scc1 LFskip
    """)
    a(f"""
    s_and_b32 s{sT1}, s2, 7
    s_mul_i32 s{sT1}, s{sT1}, 18
    s_add_u32 s{sKAP}, s{sKAP}, s{sT1}
    v_lshlrev_b32 v{t[3]}, 2, v{lane}
    """)
    for i in range(9): a(f"ds_read_b32 v{B+i}, v{t[3]} offset:{L_H + 256*i}")
    a(f"""
    s_lshr_b32 s{sT1}, s{sKAP}, 4
    s_lshl_b32 s{sT1}, s{sT1}, 6
    s_and_b32 s{sT2}, s{sKAP}, 4
    s_lshl_b32 s{sT2}, s{sT2}, 3
    s_add_u32 s{sT1}, s{sT1}, s{sT2}
    s_and_b32 s{sT2}, s{sKAP}, 8
    s_add_u32 s{sT1}, s{sT1}, s{sT2}
    s_and_b32 s{sT2}, s{sKAP}, 3
    s_lshl_b32 s{sT2}, s{sT2}, 1
    s_add_u32 s{sT1}, s{sT1}, s{sT2}
    v_and_b32 v{t[4]}, 16, v{lane}
    v_lshrrev_b32 v{t[5]}, 5, v{lane}
    v_add3_u32 v{t[7]}, v{t[4]}, v{t[5]}, s{sT1}
    v_lshlrev_b32 v{t[4]}, 2, v{t[7]}
    ds_read_b32 v{B+9}, v{t[4]} offset:{L_H}
    v_lshlrev_b32 v{t[7]}, 1, v{t[7]}
    s_waitcnt lgkmcnt(0)
    v_mov_b32 v{vh}, v{B+9}
    """)
    ln_apply([B+i for i in range(10)], vmean, vden, vrinv, [B+12+i for i in range(10)])
    for i in range(10): bf16r(B+i, B+i)
    for i in range(9): a(f"v_lshlrev_b32 v{DN+i}, 16, v{DN+i}")
    a(f"v_mul_f32 v{t[0]}, v{B}, v{DN}")
    for i in range(1, 9): a(f"v_fmac_f32 v{t[0]}, v{B+i}, v{DN+i}")
    row_allreduce("v_add_f32", [t[0]])
    xor16_32("v_add_f32", t[0], t[1])
    bf16r(t[0], t[0])
    a(f"""
    v_mul_f32 v{t[0]}, {hx(f2u(-1.4426950408889634))}, v{t[0]}
    v_exp_f32 v{t[0]}, v{t[0]}
    v_add_f32 v{t[0]}, 1.0, v{t[0]}
    v_rcp_f32 v{vxc}, v{t[0]}
    """)
    bf16r(vxc, vxc)
    a(f"""
    v_bfe_u32 v{t[4]}, v{lane}, 2, 1
    v_lshlrev_b32 v{t[4]}, 4, v{t[4]}
    v_mov_b32 v{t[5]}, 0x3f80
    v_lshlrev_b32 v{t[4]}, v{t[4]}, v{t[5]}
    v_bfe_i32 v{t[5]}, v{lane}, 3, 1
    v_bfi_b32 v{B+12}, v{t[5]}, 0, v{t[4]}
    v_and_b32 v{B+13}, v{t[5]}, v{t[4]}
    v_mul_u32_u24 v{t[8]}, 2304, v{lane}
    s_lshl_b32 s{sT1}, s{sKAP}, 4
    s_add_u32 s{sT1}, s{sT1}, {YP}
    v_add_u32 v{t[8]}, s{sT1}, v{t[8]}
    s_mov_b32 s{sT1}, {64*2304}
    s_mov_b32 s{sT2}, {128*2304}
    s_barrier
    """)
    def cg():
        a(f"buffer_load_dwordx4 {vr(G,4)}, v{t[8]}, {srd(SWS)}, 0 offen sc1")
        a(f"buffer_load_dwordx4 {vr(G+4,4)}, v{t[8]}, {srd(SWS)}, s{sT1} offen sc1")
        a(f"buffer_load_dwordx4 {vr(G+8,4)}, v{t[8]}, {srd(SWS)}, s{sT2} offen sc1")
    poll(cg, [G+1, G+3, G+5, G+7, G+9, G+11], 0, name="c")
    if debug: nstamp[0] -= 1
    stamp()
    for i in range(3): a(f"v_mov_b32 v{G+4*i+1}, v{G+4*i+2}")
    for i in range(3):
        a(f"v_mfma_f32_16x16x16_bf16 {vr(D,4)}, {vr(B+12,2)}, {vr(G+4*i,2)}, {'0' if i == 0 else vr(D,4)}")
    row_allreduce("v_add_f32", [D])
    bf16r(D, D)
    a(f"v_mul_f32 v{D}, v{D}, v{vxc}")
    bf16r(D, D)
    a(f"v_add_f32 v{D}, v{D}, v{B+9}")
    bf16r(D, D)
    a(f"""
    v_add_f32 v{D}, v{D}, v{vh}
    v_cvt_pk_bf16_f32 v{D}, v{D}, v{D}
    s_mov_b32 exec_lo, 0x00010001
    s_mov_b32 exec_hi, 0x00010001
    buffer_store_short v{D}, v{t[7]}, {srd(SOUT)}, 0 offen
    s_cmp_lg_u32 s{sKAP}, 0
    s_cbranch_scc1 Lfin
    s_mov_b64 exec, 1
    v_mov_b32 v{t[0]}, 0
    v_mov_b32 v{t[1]}, s{sTAG}
    buffer_store_dword v{t[1]}, v{t[0]}, {srd(SWS)}, 0 offen sc1
    s_branch Lfin
    LFskip:
    s_barrier
    Lfin:
    """)
    if debug:
        a(f"""
        s_memrealtime s[100:101]
        s_mul_i32 s{sT1}, s{sL}, 12
        s_add_u32 s{sT1}, s{sT1}, s{sWAVE}
        s_lshl_b32 s{sT1}, s{sT1}, 6
        s_add_u32 s{sT1}, s{sT1}, {TS}
        v_mov_b32 v{t[0]}, 0
        s_mov_b64 exec, 1
        s_waitcnt lgkmcnt(0)
        """)
        for i in range(11):
            a(f"v_mov_b32 v{t[1]}, s{80+2*i}\nbuffer_store_dword v{t[1]}, v{t[0]}, {srd(SWS)}, s{sT1} offen offset:{4*i}")
    a("Lend:\ns_endpgm")
    hdr = open("cdna_kernels/" + NAME + ".s.ref").read().split("; @launch")[0]
    open(fn, "w").write(wrap(a.text(), 256, 768, LDS_BYTES, nv, 102, header=hdr))
    print(fn, "vgprs", nv, "lines", len(a.L))

if __name__ == "__main__":
    gen("k_dbg.s", debug=True)
    gen("k_rel.s", debug=False)
```
